```python
import torch

def _softmax(x, axis=-1):
    return torch.softmax(x, dim=axis)
def _gelu(x):
    return torch.nn.functional.gelu(x, approximate="tanh")
def _silu(x):
    return torch.nn.functional.silu(x)
def _sigmoid(x):
    return torch.sigmoid(x)
def _layernorm(x, axis=-1, eps=1e-5):
    m = x.mean(dim=axis, keepdim=True)
    v = x.var(dim=axis, keepdim=True, unbiased=False)
    return (x - m) / torch.sqrt(v + eps)
def _scatter_add(tgt, idx, src, axis=0):
    return tgt.clone().index_add_(axis, idx, src)
def _segment_sum(src, seg, n):
    out = torch.zeros((n,) + src.shape[1:], dtype=src.dtype)
    return out.index_add_(0, seg, src)
def _pad(x, pw):
    flat = tuple(v for pair in reversed(pw) for v in pair)
    return torch.nn.functional.pad(x, flat)

kernel_name = 'standalone__glu_gated_geglu__prompt'

def setup_inputs():

    _w = (lambda a: (lambda t: t.to(torch.bfloat16) if t.is_floating_point() else t)(torch.as_tensor(a)))
    B, S, Dm, Df = 1, 2048, 512, 1376
    return {
        "x": _w((lambda *s: torch.randn(*s, dtype=torch.bfloat16) * 0.05)(B, S, Dm)),
        "w_gate": _w((lambda *s: torch.randn(*s, dtype=torch.bfloat16) * 0.05)(Dm, Df) * (Dm ** -0.5)),
        "w_up": _w((lambda *s: torch.randn(*s, dtype=torch.bfloat16) * 0.05)(Dm, Df) * (Dm ** -0.5)),
        "w_down": _w((lambda *s: torch.randn(*s, dtype=torch.bfloat16) * 0.05)(Df, Dm) * (Df ** -0.5)),
    }

def reference(x, w_gate, w_up, w_down):
    g = torch.einsum("bsd,df->bsf", x, w_gate)
    u = torch.einsum("bsd,df->bsf", x, w_up)
    h = _gelu(g) * u
    return torch.einsum("bsf,fd->bsd", h, w_down)
```

```python
import sys, math, struct

def f32(x):
    return struct.unpack("<I", struct.pack("<f", x))[0]

class Asm:
    def __init__(self):
        self.L = []
    def __call__(self, s):
        self.L.append(s)
    def text(self):
        return "\n".join(self.L) + "\n"

KS = 86
HBYTES = 64 * KS * 1024
C0 = -2.0 * math.sqrt(2.0 / math.pi) * math.log2(math.e)
C1 = C0 * 0.044715

def header(A, launches):
    A("; GeGLU FFN: out = (gelu_tanh(x Wg) * (x Wu)) Wd   (generated by gen1.py)")
    for l in launches:
        A(l)
    A('.amdgcn_target "amdgcn-amd-amdhsa--gfx950"')
    A(".text")

def kdesc(A, name, nvgpr, accum):
    A(f""".section .rodata,"a"
.p2align 6
.amdhsa_kernel {name}
  .amdhsa_next_free_vgpr {nvgpr}
  .amdhsa_next_free_sgpr 102
  .amdhsa_accum_offset {accum}
  .amdhsa_group_segment_fixed_size 0
  .amdhsa_kernarg_size 56
  .amdhsa_user_sgpr_count 2
  .amdhsa_user_sgpr_kernarg_segment_ptr 1
  .amdhsa_system_sgpr_workgroup_id_x 1
.end_amdhsa_kernel
.text""")

def phase1(A, order_tables=None):
    V_XOFF = [10, 11]
    V_GOFF = [12, 13, 14]
    V_UOFF = [15, 16, 17]
    V_BADDR = [18, 19, 20, 21]
    V_AADDR = [22, 23, 24]
    V_LANE16 = 25
    V_C0 = 26
    V_ONE = 28
    FR = 32
    ACC = 132
    TMP = 228
    def frag(u, which):
        b = FR + (u % 5) * 20 + which * 4
        return b
    def acc(a, e):
        return ACC + (a * 2 + e) * 16

    A("v_and_b32 v2, 63, v0")
    A("s_lshl_b32 s48, s45, 7")
    A("s_lshl_b32 s49, s44, 5")
    A("s_add_u32 s48, s48, s49")
    A("v_lshrrev_b32 v3, 3, v2")
    A("v_lshlrev_b32 v3, 2, v3")
    A("v_add_u32 v3, s48, v3")
    A("v_lshlrev_b32 v3, 10, v3")
    A("v_and_b32 v4, 7, v2")
    A("v_lshrrev_b32 v5, 4, v2")
    A("v_xor_b32 v6, v4, v5")
    A(f"v_lshl_add_u32 v{V_XOFF[0]}, v6, 4, v3")
    A("v_xor_b32 v6, 4, v6")
    A(f"v_lshl_add_u32 v{V_XOFF[1]}, v6, 4, v3")
    A("s_mul_i32 s48, s46, 192")
    A("s_mul_i32 s49, s44, 44032")
    A("s_add_u32 s48, s48, s49")
    A("s_mov_b32 s49, 0x15555556")
    A("s_movk_i32 s50, 2752")
    for q in range(3):
        A(f"v_add_u32 v3, {64*q}, v2")
        A("v_mul_hi_u32 v4, v3, s49")
        A("v_mul_u32_u24 v5, 12, v4")
        A("v_sub_u32 v5, v3, v5")
        A("v_mul_lo_u32 v4, v4, s50")
        A("v_add_u32 v4, s48, v4")
        if q:
            A(f"v_subrev_u32 v4, {1024*q}, v4")
        A(f"v_lshl_add_u32 v{V_GOFF[q]}, v5, 4, v4")
        A("v_xor_b32 v5, 2, v5")
        A(f"v_lshl_add_u32 v{V_UOFF[q]}, v5, 4, v4")
    A("s_mul_i32 s47, s44, 10240")
    A("s_mov_b32 s52, 0")
    A("s_mov_b32 s53, 0")

    def dma_list(stage):
        slot = stage % 4
        D = []
        D.append([f"s_add_u32 m0, s47, {slot*40960}", "s_nop 0",
                  f"buffer_load_dwordx4 v{V_XOFF[0]}, s[20:23], s52 offen offset:0 lds"])
        for j in range(1, 4):
            D.append([f"buffer_load_dwordx4 v{V_XOFF[j&1]}, s[20:23], s52 offen offset:{1024*j} lds"])
        D.append([f"s_add_u32 m0, s47, {slot*40960+4096}", "s_nop 0",
                  f"buffer_load_dwordx4 v{V_GOFF[0]}, s[24:27], s53 offen offset:0 lds"])
        for q in range(1, 3):
            D.append([f"buffer_load_dwordx4 v{V_GOFF[q]}, s[24:27], s53 offen offset:{1024*q} lds"])
        D.append([f"s_add_u32 m0, s47, {slot*40960+4096+3072}", "s_nop 0",
                  f"buffer_load_dwordx4 v{V_UOFF[0]}, s[28:31], s53 offen offset:0 lds"])
        for q in range(1, 3):
            D.append([f"buffer_load_dwordx4 v{V_UOFF[q]}, s[28:31], s53 offen offset:{1024*q} lds"])
        D[-1] = D[-1] + ["s_add_u32 s52, s52, 128", "s_add_u32 s53, s53, 176128"]
        return D

    for st in (0, 1):
        for d in dma_list(st):
            for i in d:
                A(i)

    A("s_and_b32 s48, s44, 1")
    A("s_lshr_b32 s49, s44, 1")
    A("s_mul_i32 s50, s48, 20480")
    A("v_and_b32 v3, 31, v2")
    A("v_lshrrev_b32 v4, 5, v2")
    A("v_bfe_u32 v5, v2, 1, 3")
    A("v_xor_b32 v5, v5, v4")
    A("v_lshlrev_b32 v6, 7, v3")
    A("v_add_u32 v6, s50, v6")
    A(f"v_lshl_add_u32 v{V_BADDR[0]}, v5, 4, v6")
    for s in range(1, 4):
        A(f"v_xor_b32 v{V_BADDR[s]}, {s*32}, v{V_BADDR[0]}")
    A("v_bfe_u32 v3, v2, 4, 1")
    A("v_bfe_u32 v5, v2, 2, 2")
    A("v_lshl_add_u32 v5, v4, 3, v5")
    A("v_mul_u32_u24 v5, 192, v5")
    A("v_mul_u32_u24 v6, 3072, v3")
    A("v_add3_u32 v5, v5, v6, 0")
    A("v_add_u32 v5, 4096, v5")
    A("v_and_b32 v6, 1, v2")
    A("v_lshl_add_u32 v5, v6, 4, v5")
    A("v_bfe_u32 v6, v2, 1, 1")
    A("v_lshl_add_u32 v5, v6, 3, v5")
    A("s_mul_i32 s50, s49, 3")
    for a in range(3):
        A(f"s_add_u32 s51, s50, {a}")
        A("v_xor_b32 v6, s51, v3")
        A(f"v_lshl_add_u32 v{V_AADDR[a]}, v6, 5, v5")
    A(f"v_lshlrev_b32 v{V_LANE16}, 4, v2")
    A(f"v_mov_b32 v{V_C0}, 0x{f32(C0):08x}")
    A(f"v_mov_b32 v{V_C0+1}, 0x{f32(C0):08x}")
    A(f"v_mov_b32 v{V_ONE}, 1.0")
    A(f"v_mov_b32 v{V_ONE+1}, 1.0")
    A(f"s_mov_b32 s54, 0x{f32(C1):08x}")
    A(f"s_mov_b32 s55, 0x{f32(C1):08x}")
    A("s_lshl_b32 s50, s45, 2")
    A("s_lshl_b32 s51, s48, 1")
    A("s_add_u32 s50, s50, s51")
    A(f"s_mul_i32 s50, s50, {KS}")
    A("s_mul_i32 s51, s46, 6")
    A("s_mul_i32 s62, s49, 3")
    A("s_add_u32 s51, s51, s62")
    for a in range(3):
        A(f"s_add_u32 s62, s51, {a}")
        A("s_add_u32 s63, s50, s62")
        A("s_lshl_b32 s63, s63, 10")
        A(f"s_cmp_lt_u32 s62, {KS}")
        A(f"s_cselect_b32 s{56+2*a}, s63, 0x7f000000")
        A(f"s_add_u32 s63, s63, {KS*1024}")
        A(f"s_cmp_lt_u32 s62, {KS}")
        A(f"s_cselect_b32 s{57+2*a}, s63, 0x7f000000")

    def reads(u):
        t = u % 4
        R = []
        for e in range(2):
            b = frag(u, e)
            R.append(f"ds_read_b128 v[{b}:{b+3}], v{V_BADDR[t]} offset:{e*10240}")
        for a in range(3):
            b = frag(u, 2 + a)
            for kk in range(2):
                R.append(f"ds_read_b64_tr_b16 v[{b+2*kk}:{b+2*kk+1}], v{V_AADDR[a]} offset:{t*10240+kk*768}")
        return R
    def mfma(u, a, e):
        c = acc(a, e)
        fa = frag(u, 2 + a); fb = frag(u, e)
        src_c = "0" if u == 0 else f"v[{c}:{c+15}]"
        return f"v_mfma_f32_32x32x16_bf16 v[{c}:{c+15}], v[{fa}:{fa+3}], v[{fb}:{fb+3}], {src_c}"
    def slot_advance(stage):
        d = 40960 if stage % 4 else -3 * 40960
        O = []
        for v in V_BADDR + V_AADDR:
            if d > 0:
                O.append(f"v_add_u32 v{v}, {d}, v{v}")
            else:
                O.append(f"v_subrev_u32 v{v}, {-d}, v{v}")
        return O

    A("s_waitcnt vmcnt(10)")
    A("s_barrier")
    for r in reads(0):
        A(r)
    for st in range(8):
        D = dma_list(st + 2) if st + 2 < 8 else []
        last = (st == 7)
        for t in range(4):
            u = 4 * st + t
            if last:
                break
            if t < 3:
                pre = []
                R = reads(u + 1)
            else:
                n_out = 10 if st + 2 < 8 else 0
                pre = [f"s_waitcnt vmcnt({n_out})", "s_barrier"] + slot_advance(st + 1)
                R = reads(u + 1)
                if st + 1 == 7:
                    R = R + reads(u + 2) + reads(u + 3) + reads(u + 4)
            M = [mfma(u, a, e) for a in range(3) for e in range(2)]
            nd = [4, 3, 3, 0][t]
            myD = [D.pop(0) for _ in range(min(nd, len(D)))]
            A("s_waitcnt lgkmcnt(0)")
            if pre:
                for p in pre:
                    A(p)
            per = (len(R) + 3) // 4
            for i, m in enumerate(M):
                A(m)
                if i < 4:
                    for r in R[i*per:(i+1)*per]:
                        A(r)
                if myD and i >= 1:
                    for x in myD.pop(0):
                        A(x)
            assert not myD
    A("s_waitcnt lgkmcnt(0)")
    tiles = [(a, e) for a in range(3) for e in range(2)]
    def tile_mfmas(j):
        a, e = tiles[j]
        return [mfma(28 + t, a, e) for t in range(4)]
    def epi(j):
        a, e = tiles[j]
        c = acc(a, e)
        T = TMP + (j % 2) * 12
        O = []
        out = T + 8
        for p in range(4):
            g = c + 2 * p; uu = c + 8 + 2 * p
            t0 = T + (p % 2) * 4
            O.append([f"v_pk_mul_f32 v[{t0}:{t0+1}], v[{g}:{g+1}], v[{g}:{g+1}]",
                      f"v_pk_fma_f32 v[{t0}:{t0+1}], v[{t0}:{t0+1}], s[54:55], v[{V_C0}:{V_C0+1}]",
                      f"v_pk_mul_f32 v[{t0}:{t0+1}], v[{t0}:{t0+1}], v[{g}:{g+1}]",
                      f"v_exp_f32 v{t0}, v{t0}",
                      f"v_exp_f32 v{t0+1}, v{t0+1}",
                      "NOP",
                      f"v_pk_add_f32 v[{t0}:{t0+1}], v[{t0}:{t0+1}], v[{V_ONE}:{V_ONE+1}]",
                      f"v_rcp_f32 v{t0}, v{t0}",
                      f"v_rcp_f32 v{t0+1}, v{t0+1}",
                      "NOP",
                      f"v_pk_mul_f32 v[{t0}:{t0+1}], v[{t0}:{t0+1}], v[{g}:{g+1}]",
                      f"v_pk_mul_f32 v[{t0}:{t0+1}], v[{t0}:{t0+1}], v[{uu}:{uu+1}]",
                      f"v_cvt_pk_bf16_f32 v{out+p}, v{t0}, v{t0+1}"])
        S = []
        for pa, pb in ((0, 1), (2, 3)):
            xa = [x for x in O[pa] if x != "NOP"]; xb = [x for x in O[pb] if x != "NOP"]
            for i in range(len(xa)):
                S.append(xa[i]); S.append(xb[i])
        S.append(f"buffer_store_dwordx4 v[{out}:{out+3}], v{V_LANE16}, s[32:35], s{56+2*a+e} offen")
        return S
    for m in tile_mfmas(0):
        A(m)
    for m in tile_mfmas(1):
        A(m)
    A("s_nop 7")
    for j in range(6):
        E = epi(j)
        M = tile_mfmas(j + 2) if j + 2 < 6 else []
        step = len(E) // 4
        for i, x in enumerate(E):
            if M and i % step == 0:
                A(M.pop(0))
            A(x)
        assert not M

def common_prologue(A):
    A("s_load_dwordx8 s[4:11], s[0:1], 0")
    A("s_load_dwordx4 s[12:15], s[0:1], 32")
    A("s_load_dwordx2 s[16:17], s[0:1], 48")
    A("v_lshrrev_b32 v1, 6, v0")
    A("s_nop 0")
    A("v_readfirstlane_b32 s44, v1")

def srds(A):
    A("s_waitcnt lgkmcnt(0)")
    def srd(d, b, n):
        A(f"s_mov_b32 s{d}, s{b}")
        A(f"s_mov_b32 s{d+1}, s{b+1}")
        A(f"s_mov_b32 s{d+2}, {n}")
        A(f"s_mov_b32 s{d+3}, 0x20000")
    srd(20, 4, 2048*1024)
    srd(24, 6, 512*2752)
    srd(28, 8, 512*2752)
    srd(32, 16, HBYTES)
    srd(36, 10, 1376*1024)
    srd(40, 12, 2048*1024)

def phase2(A):
    V_DOFF = [10, 11, 12, 13]
    V_A = [[14, 15, 16], [17, 18, 19]]
    V_LANE16 = 20
    V_OUT = 21
    BR = 32
    AR = 96
    PRE = 128
    ACC = 184
    X = 216
    NPRE = 7
    A("v_and_b32 v2, 63, v0")
    A("s_lshr_b32 s66, s44, 1")
    A("s_and_b32 s67, s44, 1")
    A("v_lshrrev_b32 v3, 3, v2")
    A("v_lshlrev_b32 v3, 10, v3")
    A("s_lshl_b32 s48, s65, 7")
    A("v_add_u32 v3, s48, v3")
    A("v_and_b32 v4, 7, v2")
    A("v_bfe_u32 v5, v2, 4, 1")
    A("v_lshlrev_b32 v5, 2, v5")
    A("v_xor_b32 v4, v4, v5")
    A(f"v_lshl_add_u32 v{V_DOFF[0]}, v4, 4, v3")
    for q in range(1, 4):
        A(f"v_add_u32 v{V_DOFF[q]}, {q*7168}, v{V_DOFF[0]}")
    A("s_mul_i32 s68, s66, 43")
    A("s_mul_i32 s48, s67, 5")
    A("s_add_u32 s68, s68, s48")
    A("s_lshl_b32 s68, s68, 14")
    A("s_mul_i32 s69, s66, 10")
    A("s_add_u32 s69, s69, s48")
    A("s_lshl_b32 s69, s69, 11")
    def batch(j):
        O = []
        for n in range(10):
            g, q = divmod(n, 4)
            if q == 0:
                O.append(f"s_add_u32 m0, s69, {j*40960 + g*4096}")
                O.append(f"s_add_u32 s70, s68, {j*163840 + g*32768}")
            O.append(f"buffer_load_dwordx4 v{V_DOFF[q]}, s[36:39], s70 offen offset:{1024*q} lds")
        return O
    def minibatch():
        O = []
        O.append("s_mul_i32 s70, s66, 20480")
        O.append("s_mul_i32 s71, s67, 3072")
        O.append("s_add_u32 m0, s70, s71")
        O.append("s_mul_i32 s70, s66, 43")
        O.append("s_add_u32 s70, s70, 40")
        O.append("s_lshl_b32 s70, s70, 14")
        O.append("s_mul_i32 s71, s67, 24576")
        O.append("s_add_u32 s70, s70, s71")
        for q in range(3):
            O.append(f"buffer_load_dwordx4 v{V_DOFF[q]}, s[36:39], s70 offen offset:{1024*q} lds")
        return O
    def pos(i):
        if i >= 40:
            return i - 40
        return 20 * (i // 10) + (i % 10)
    for j in range(4):
        for x in batch(j):
            A(x)
    A("v_lshrrev_b32 v3, 5, v2")
    A("v_bfe_u32 v4, v2, 2, 2")
    A("v_lshl_add_u32 v3, v3, 3, v4")
    A("v_lshlrev_b32 v3, 7, v3")
    A("v_bfe_u32 v4, v2, 3, 1")
    A("v_lshl_add_u32 v3, v4, 6, v3")
    A("v_and_b32 v4, 1, v2")
    A("v_lshl_add_u32 v3, v4, 5, v3")
    A("v_bfe_u32 v4, v2, 4, 1")
    A("v_lshl_add_u32 v3, v4, 4, v3")
    A("v_bfe_u32 v4, v2, 1, 1")
    A("v_lshl_add_u32 v3, v4, 3, v3")
    A("s_mul_i32 s48, s66, 20480")
    A(f"v_add_u32 v{V_A[0][0]}, s48, v3")
    A(f"v_xor_b32 v{V_A[1][0]}, 64, v{V_A[0][0]}")
    for dt in range(2):
        for sgm in range(1, 3):
            A(f"v_add_u32 v{V_A[dt][sgm]}, {sgm*61440}, v{V_A[dt][0]}")
    A(f"v_lshlrev_b32 v{V_LANE16}, 4, v2")
    A("s_lshl_b32 s72, s64, 1")
    A("s_add_u32 s72, s72, s67")
    A(f"s_mul_i32 s72, s72, {KS}")
    A("s_mul_i32 s48, s66, 43")
    A("s_add_u32 s72, s72, s48")
    A("s_lshl_b32 s72, s72, 10")
    A("v_and_b32 v3, 7, v2")
    A("v_lshlrev_b32 v3, 2, v3")
    A("v_bfe_u32 v4, v2, 3, 2")
    A("v_add_u32 v3, v3, v4")
    A("s_lshl_b32 s48, s64, 6")
    A("s_lshl_b32 s49, s67, 5")
    A("s_add_u32 s48, s48, s49")
    A("v_add_u32 v3, s48, v3")
    A("v_lshlrev_b32 v3, 10, v3")
    A("v_lshrrev_b32 v4, 5, v2")
    A("v_lshl_add_u32 v3, v4, 5, v3")
    A("s_lshl_b32 s48, s65, 7")
    A("s_lshl_b32 s49, s66, 6")
    A("s_add_u32 s48, s48, s49")
    A(f"v_add_u32 v{V_OUT}, s48, v3")

    def areads(i, base):
        O = []
        off = pos(i) * 2048
        sgm = off // 61440
        off -= sgm * 61440
        for dt in range(2):
            for kk in range(2):
                b = base + dt * 4 + kk * 2
                O.append(f"ds_read_b64_tr_b16 v[{b}:{b+1}], v{V_A[dt][sgm]} offset:{off + kk*512}")
        return O
    def abase(i):
        return PRE + 8 * i if i < NPRE else AR + 8 * (i % 4)
    def bload(i):
        b = BR + 4 * (i % 16)
        g, q = divmod(i, 4)
        O = []
        if q == 0 and g > 0:
            O.append(f"s_add_u32 s72, s72, 4096")
        O.append(f"buffer_load_dwordx4 v[{b}:{b+3}], v{V_LANE16}, s[32:35], s72 offen offset:{1024*q}")
        return O
    A("s_waitcnt vmcnt(30)")
    A("s_barrier")
    for i in range(NPRE):
        for x in areads(i, abase(i)):
            A(x)
    A("s_waitcnt lgkmcnt(0)")
    A("s_barrier")
    for x in minibatch():
        A(x)
    NB = 12
    for i in range(NB):
        for x in bload(i):
            A(x)
    A(f"s_waitcnt vmcnt({NB})")
    A("s_barrier")
    for i in range(NPRE, NPRE + 2):
        for x in areads(i, abase(i)):
            A(x)
    for i in range(43):
        nxt = i + 2
        R = areads(nxt, abase(nxt)) if (nxt >= NPRE + 2 and nxt < 43) else []
        n_out = min(NB - 1, 42 - i)
        if i >= NPRE:
            lg = 4 if (i + 1 < 43) else 0
            A(f"s_waitcnt vmcnt({n_out}) lgkmcnt({lg})")
        else:
            A(f"s_waitcnt vmcnt({n_out})")
        b = BR + 4 * (i % 16)
        ab = abase(i)
        for dt in range(2):
            c = ACC + 16 * dt
            src_c = "0" if i == 0 else f"v[{c}:{c+15}]"
            A(f"v_mfma_f32_32x32x16_bf16 v[{c}:{c+15}], v[{ab+4*dt}:{ab+4*dt+3}], v[{b}:{b+3}], {src_c}")
            if dt == 0:
                for x in R:
                    A(x)
        if i + NB < 43:
            for x in bload(i + NB):
                A(x)
    A("s_mul_i32 s48, s66, 20480")
    A("s_lshl_b32 s49, s67, 12")
    A("s_add_u32 s48, s48, s49")
    A("s_add_u32 s48, s48, 6144")
    A(f"v_add_u32 v3, s48, v{V_LANE16}")
    A("s_xor_b32 s50, s66, 1")
    A("s_mul_i32 s48, s50, 20480")
    A("s_add_u32 s48, s48, s49")
    A("s_add_u32 s48, s48, 6144")
    A(f"v_add_u32 v4, s48, v{V_LANE16}")
    A("s_nop 7")
    A("s_nop 3")
    A("s_cmp_eq_u32 s66, 0")
    A("s_cbranch_scc1 P2_KH0")
    for keep, lab in ((1, None), (0, "P2_KH0")):
        if lab:
            A(f"{lab}:")
        snd = ACC + 16 * (1 - keep); kp = ACC + 16 * keep
        for q in range(4):
            A(f"ds_write_b128 v3, v[{snd+4*q}:{snd+4*q+3}] offset:{1024*q}")
        A("s_waitcnt lgkmcnt(0)")
        A("s_barrier")
        for q in range(4):
            A(f"ds_read_b128 v[{X+4*q}:{X+4*q+3}], v4 offset:{1024*q}")
        for q in range(4):
            A(f"s_waitcnt lgkmcnt({3-q})")
            A(f"v_pk_add_f32 v[{X+4*q}:{X+4*q+1}], v[{X+4*q}:{X+4*q+1}], v[{kp+4*q}:{kp+4*q+1}]")
            A(f"v_pk_add_f32 v[{X+4*q+2}:{X+4*q+3}], v[{X+4*q+2}:{X+4*q+3}], v[{kp+4*q+2}:{kp+4*q+3}]")
            A(f"v_cvt_pk_bf16_f32 v{BR+2*q}, v{X+4*q}, v{X+4*q+1}")
            A(f"v_cvt_pk_bf16_f32 v{BR+2*q+1}, v{X+4*q+2}, v{X+4*q+3}")
            if q == 1:
                A(f"buffer_store_dwordx4 v[{BR}:{BR+3}], v{V_OUT}, s[40:43], 0 offen")
        A(f"buffer_store_dwordx4 v[{BR+4}:{BR+7}], v{V_OUT}, s[40:43], 0 offen offset:16")
        A("s_endpgm")

def main(out):
    A = Asm()
    header(A, ["; @launch kernel=geglu_p1_kernel grid=(256,1,1) block=(256,1,1) lds=163840",
               "; @launch kernel=geglu_p2_kernel grid=(256,1,1) block=(256,1,1) lds=163840"])
    A(".globl geglu_p1_kernel\n.p2align 8\n.type geglu_p1_kernel,@function\ngeglu_p1_kernel:")
    common_prologue(A)
    A("s_cmp_ge_u32 s2, 256")
    A("s_cbranch_scc1 P1_END")
    A("s_and_b32 s48, s2, 7")
    A("s_lshr_b32 s49, s2, 3")
    A("s_and_b32 s45, s48, 1")
    A("s_lshl_b32 s45, s45, 3")
    A("s_and_b32 s50, s49, 7")
    A("s_add_u32 s45, s45, s50")
    A("s_lshr_b32 s46, s48, 1")
    A("s_lshl_b32 s46, s46, 2")
    A("s_lshr_b32 s50, s49, 3")
    A("s_add_u32 s46, s46, s50")
    A("s_cmp_ge_u32 s46, 15")
    A("s_cbranch_scc1 P1_END")
    srds(A)
    phase1(A)
    A("P1_END:")
    A("s_endpgm")
    kdesc(A, "geglu_p1_kernel", 256, 256)
    A(".globl geglu_p2_kernel\n.p2align 8\n.type geglu_p2_kernel,@function\ngeglu_p2_kernel:")
    common_prologue(A)
    A("s_cmp_ge_u32 s2, 256")
    A("s_cbranch_scc0 P2_GO")
    A("s_endpgm")
    A("P2_GO:")
    A("s_and_b32 s48, s2, 7")
    A("s_lshr_b32 s49, s2, 3")
    A("s_lshl_b32 s64, s48, 2")
    A("s_and_b32 s50, s49, 3")
    A("s_add_u32 s64, s64, s50")
    A("s_lshr_b32 s65, s49, 2")
    srds(A)
    phase2(A)
    kdesc(A, "geglu_p2_kernel", 256, 256)
    open(out, "w").write(A.text())

if __name__ == "__main__":
    main(sys.argv[1])
```
